```python
import torch

def _softmax(x, axis=-1):
    return torch.softmax(x, dim=axis)
def _gelu(x):
    return torch.nn.functional.gelu(x, approximate="tanh")
def _silu(x):
    return torch.nn.functional.silu(x)
def _sigmoid(x):
    return torch.sigmoid(x)
def _layernorm(x, axis=-1, eps=1e-5):
    m = x.mean(dim=axis, keepdim=True)
    v = x.var(dim=axis, keepdim=True, unbiased=False)
    return (x - m) / torch.sqrt(v + eps)
def _scatter_add(tgt, idx, src, axis=0):
    return tgt.clone().index_add_(axis, idx, src)
def _segment_sum(src, seg, n):
    out = torch.zeros((n,) + src.shape[1:], dtype=src.dtype)
    return out.index_add_(0, seg, src)
def _pad(x, pw):
    flat = tuple(v for pair in reversed(pw) for v in pair)
    return torch.nn.functional.pad(x, flat)

kernel_name = 'interleave_layers__gqa_block_cached__mha_block_cached__decode'

def setup_inputs():

    _w = (lambda a: (lambda t: t.to(torch.bfloat16) if t.is_floating_point() else t)(torch.as_tensor(a)))
    def _A_setup():
        B, Sq, D = 8, 1, 512
        Hq, Hkv, Sk, Dh = 32, 8, 4096, 128
        assert Hq % Hkv == 0, (Hq, Hkv)
        return {
            "x": _w((lambda *s: torch.randn(*s, dtype=torch.bfloat16) * 0.1)(B, Sq, D)),
            "k_cache": _w((lambda *s: torch.randn(*s, dtype=torch.bfloat16) * 0.8)(B, Hkv, Sk, Dh)),
            "v_cache": _w((lambda *s: torch.randn(*s, dtype=torch.bfloat16) * 6.4)(B, Hkv, Sk, Dh)),
            "wq": _w((lambda *s: torch.randn(*s, dtype=torch.bfloat16) * 0.8)(D, Hq * Dh) * (D ** -0.5)),
            "wo": _w((lambda *s: torch.randn(*s, dtype=torch.bfloat16) * 6.4)(Hq * Dh, D) * ((Hq * Dh) ** -0.5)),
        }
    _A_in = _A_setup()

    def _B_setup():
        B, Sq, D = 8, 1, 512
        H, Sk, Dh = 32, 4096, 128
        return {
            "x": _w((lambda *s: torch.randn(*s, dtype=torch.bfloat16) * 0.1)(B, Sq, D)),
            "k_cache": _w((lambda *s: torch.randn(*s, dtype=torch.bfloat16) * 1.6)(B, H, Sk, Dh)),
            "v_cache": _w((lambda *s: torch.randn(*s, dtype=torch.bfloat16) * 3.2)(B, H, Sk, Dh)),
            "wq": _w((lambda *s: torch.randn(*s, dtype=torch.bfloat16) * 1.6)(D, H * Dh) * (D ** -0.5)),
            "wo": _w((lambda *s: torch.randn(*s, dtype=torch.bfloat16) * 3.2)(H * Dh, D) * ((H * Dh) ** -0.5)),
        }
    _B_in = _B_setup()

    return {
        "A_x": _A_in["x"],
        "A_k_cache": _A_in["k_cache"],
        "A_v_cache": _A_in["v_cache"],
        "A_wq": _A_in["wq"],
        "A_wo": _A_in["wo"],
        "B_x": _B_in["x"],
        "B_k_cache": _B_in["k_cache"],
        "B_v_cache": _B_in["v_cache"],
        "B_wq": _B_in["wq"],
        "B_wo": _B_in["wo"],
    }

def reference(A_x, A_k_cache, A_v_cache, A_wq, A_wo, B_x, B_k_cache, B_v_cache, B_wq, B_wo):
    def _A_ref(x, k_cache, v_cache, wq, wo):
        B, Sq, D = x.shape
        Hq, Dh = 32, 128
        Hkv = k_cache.shape[1]
        rep = Hq // Hkv
        q = (lambda x, *d: x.permute(*d))((x @ wq).reshape(B, Sq, Hq, Dh), 0, 2, 1, 3)
        k = (lambda x, n, axis: torch.repeat_interleave(x, n, dim=axis))(k_cache, rep, axis=1)
        v = (lambda x, n, axis: torch.repeat_interleave(x, n, dim=axis))(v_cache, rep, axis=1)
        scores = torch.einsum("bhqd,bhkd->bhqk", q, k) * (Dh ** -0.5)
        p = _softmax(scores, axis=-1)
        o = torch.einsum("bhqk,bhkd->bhqd", p, v)
        return (lambda x, *d: x.permute(*d))(o, 0, 2, 1, 3).reshape(B, Sq, Hq * Dh) @ wo

    def _B_ref(x, k_cache, v_cache, wq, wo):
        B, Sq, D = x.shape
        H, Dh = 32, 128
        q = (lambda x, *d: x.permute(*d))((x @ wq).reshape(B, Sq, H, Dh), 0, 2, 1, 3)
        scores = torch.einsum("bhqd,bhkd->bhqk", q, k_cache) * (Dh ** -0.5)
        p = _softmax(scores, axis=-1)
        o = torch.einsum("bhqk,bhkd->bhqd", p, v_cache)
        return (lambda x, *d: x.permute(*d))(o, 0, 2, 1, 3).reshape(B, Sq, H * Dh) @ wo

    x = A_x
    x = x + _A_ref(_layernorm(x, axis=-1), A_k_cache, A_v_cache, A_wq, A_wo)
    x = x + _B_ref(_layernorm(x, axis=-1), B_k_cache, B_v_cache, B_wq, B_wo)
    x = x + _A_ref(_layernorm(x, axis=-1), A_k_cache, A_v_cache, A_wq, A_wo)
    x = x + _B_ref(_layernorm(x, axis=-1), B_k_cache, B_v_cache, B_wq, B_wo)
    return x
```

```python
import re

TRANS = ("v_exp_f32", "v_log_f32", "v_rcp_f32", "v_rsq_f32", "v_sqrt_f32", "v_sin_f32", "v_cos_f32",
         "v_rcp_iflag_f32")
DPP_TOK = ("row_ror:", "row_shr:", "row_shl:", "quad_perm:", "row_bcast:", "row_mirror", "row_half_mirror",
           "row_newbcast:", "wave_")

_reg_re = re.compile(r"^(-|\|)?(abs\()?([vsa])(\d+)\)?\|?$")
_rng_re = re.compile(r"^(-)?([vsa])\[(\d+):(\d+)\]$")


def regs_of(tok):
    tok = tok.strip()
    m = _reg_re.match(tok)
    if m:
        return [(m.group(3), int(m.group(4)))]
    m = _rng_re.match(tok)
    if m:
        return [(m.group(2), i) for i in range(int(m.group(3)), int(m.group(4)) + 1)]
    if tok == "vcc":
        return [("s", 106), ("s", 107)]
    if tok == "vcc_lo":
        return [("s", 106)]
    if tok == "vcc_hi":
        return [("s", 107)]
    if tok == "exec":
        return [("x", 0)]
    if tok == "m0":
        return [("m", 0)]
    return []


def split_ops(s):
    out, depth, cur = [], 0, ""
    for ch in s:
        if ch in "[(":
            depth += 1
        if ch in "])":
            depth -= 1
        if ch == "," and depth == 0:
            out.append(cur.strip())
            cur = ""
        else:
            cur += ch
    if cur.strip():
        out.append(cur.strip())
    return out


class Ins:
    __slots__ = ("text", "op", "wr", "rd", "kind", "dpp", "srcC", "ws", "store_data")

    def __init__(self, text):
        self.text = text
        t = text.split(";")[0].strip()
        parts = t.split(None, 1)
        op = parts[0]
        self.op = op
        rest = parts[1] if len(parts) > 1 else ""
        ops = split_ops(rest)
        mods = ""
        if ops:
            lp = ops[-1].split(None, 1)
            ops[-1] = lp[0]
            if len(lp) > 1:
                mods = lp[1]
        self.dpp = any(k in mods for k in DPP_TOK)
        self.wr, self.rd, self.srcC = [], [], []
        self.store_data = []
        self.ws = 1
        base = op.replace("_e32", "").replace("_e64", "").replace("_dpp", "").replace("_sdwa", "")
        if op.startswith("v_"):
            if base in TRANS:
                self.kind = "trans"
            elif base.startswith("v_dot"):
                self.kind = "dot"
            elif base.startswith("v_mfma"):
                self.kind = "mfma"
            else:
                self.kind = "valu"
            if base.startswith("v_cmp"):
                self.wr = regs_of(ops[0])
                for o in ops[1:]:
                    self.rd += regs_of(o)
            elif base in ("v_permlane32_swap_b32", "v_permlane16_swap_b32", "v_swap_b32"):
                self.wr = regs_of(ops[0]) + regs_of(ops[1])
                self.rd = list(self.wr)
            elif base in ("v_add_co_u32", "v_sub_co_u32", "v_addc_co_u32", "v_subb_co_u32", "v_div_scale_f32",
                          "v_mad_u64_u32"):
                self.wr = regs_of(ops[0]) + regs_of(ops[1])
                for o in ops[2:]:
                    self.rd += regs_of(o)
            else:
                self.wr = regs_of(ops[0])
                for o in ops[1:]:
                    self.rd += regs_of(o)
                if base in ("v_fmac_f32", "v_dot2c_f32_bf16", "v_pk_fmac_f16"):
                    self.rd += regs_of(ops[0])
                    self.srcC = regs_of(ops[0])
                if base == "v_dot2_f32_bf16" and len(ops) == 4:
                    self.srcC = regs_of(ops[3])
                if base == "v_cndmask_b32" and len(ops) == 3:
                    self.rd += regs_of("vcc")
                if base == "v_div_fmas_f32":
                    self.rd += regs_of("vcc")
                if self.dpp:
                    self.rd += []
        elif op.startswith("buffer_") or op.startswith("global_") or op.startswith("flat_"):
            self.kind = "vmem"
            isload = "load" in op
            isatomic = "atomic" in op
            lds = " lds" in (" " + mods)
            if op in ("buffer_wbl2", "buffer_inv"):
                pass
            elif op.startswith("buffer_"):
                if isload and not lds:
                    self.wr = regs_of(ops[0])
                    for o in ops[1:]:
                        self.rd += regs_of(o)
                elif isload and lds:
                    for o in ops:
                        self.rd += regs_of(o)
                    self.rd += regs_of("m0")
                else:
                    for o in ops:
                        self.rd += regs_of(o)
                    if isatomic and "sc0" in mods:
                        self.wr = regs_of(ops[0])
                    if ("x4" in op or "x3" in op):
                        self.store_data = regs_of(ops[0])
            else:
                if isload:
                    if "lds" in op:
                        for o in ops:
                            self.rd += regs_of(o)
                        self.rd += regs_of("m0")
                    else:
                        self.wr = regs_of(ops[0])
                        for o in ops[1:]:
                            self.rd += regs_of(o)
                elif isatomic and "sc0" in mods:
                    self.wr = regs_of(ops[0])
                    for o in ops[1:]:
                        self.rd += regs_of(o)
                else:
                    for o in ops:
                        self.rd += regs_of(o)
                    if ("x4" in op or "x3" in op):
                        self.store_data = regs_of(ops[1])
        elif op.startswith("ds_"):
            self.kind = "ds"
            if "read" in op or "permute" in op or "swizzle" in op:
                self.wr = regs_of(ops[0])
                for o in ops[1:]:
                    self.rd += regs_of(o)
            else:
                for o in ops:
                    self.rd += regs_of(o)
        elif op.startswith("s_"):
            self.kind = "salu"
            if op == "s_nop":
                self.ws = int(ops[0], 0) + 1
            elif op.startswith("s_cmp") or op.startswith("s_cbranch") or op in (
                    "s_branch", "s_waitcnt", "s_barrier", "s_endpgm", "s_sleep", "s_setprio"):
                for o in ops:
                    self.rd += regs_of(o)
            else:
                self.wr = regs_of(ops[0])
                for o in ops[1:]:
                    self.rd += regs_of(o)
                if "saveexec" in op:
                    self.wr += regs_of("exec")
        else:
            raise ValueError("unknown op " + text)


def need_ws(p, c):
    n = 0
    pv = p.kind in ("valu", "trans", "dot", "mfma")
    cv = c.kind in ("valu", "trans", "dot", "mfma")
    pw = set(p.wr)
    if not pw and not p.store_data:
        return 0
    crd = set(c.rd)
    cwr = set(c.wr)
    vw = {r for r in pw if r[0] in "va"}
    sw = {r for r in pw if r[0] == "s"}
    if pv:
        if vw:
            if c.dpp and (vw & crd):
                n = max(n, 2)
            if p.kind == "trans" and cv and c.kind != "trans" and (vw & crd):
                n = max(n, 1)
            if p.kind == "dot" and cv and (vw & (crd | cwr)):
                if c.op == p.op:
                    ab = crd - set(c.srcC)
                    if vw & ab:
                        n = max(n, 3)
                    elif (vw & cwr) and not (vw & set(c.srcC)):
                        n = max(n, 3)
                else:
                    n = max(n, 3)
            if p.kind == "dot" and c.kind in ("vmem", "ds") and (vw & crd):
                n = max(n, 3)
            if c.op.startswith("v_readlane") or c.op.startswith("v_readfirstlane"):
                if vw & crd:
                    n = max(n, 1)
            if c.op.startswith("v_permlane") and (vw & crd):
                n = max(n, 2)
            if c.kind == "mfma" and p.kind != "mfma" and (vw & crd):
                n = max(n, 2)
            if p.kind == "mfma" and (vw & (crd | cwr)):
                n = max(n, 20)
        if sw:
            if cv and (sw & crd):
                if c.op.startswith("v_readlane") or c.op.startswith("v_writelane"):
                    n = max(n, 4)
                elif c.op.startswith("v_div_fmas"):
                    n = max(n, 4)
                else:
                    n = max(n, 2)
            if c.kind == "vmem" and (sw & crd):
                n = max(n, 5)
            if c.kind == "salu" and (sw & crd):
                n = max(n, 1)
    if p.kind == "salu" and ("m", 0) in pw:
        if c.kind in ("vmem", "ds") and ("m", 0) in crd:
            n = max(n, 1)
    if p.store_data and (set(p.store_data) & cwr):
        n = max(n, 2)
    return n


class Asm:
    def __init__(self):
        self.lines = []
        self.win = []
        self.n_ins = 0

    def raw(self, s):
        self.lines.append(s)

    def comment(self, s):
        self.lines.append("    ; " + s)

    def label(self, name):
        self.flush()
        self.lines.append(name + ":")

    def flush(self):
        dist = 0
        worst = 0
        for p in reversed(self.win):
            if p.kind in ("valu", "trans", "dot", "mfma") or p.store_data or (p.kind == "salu" and ("m", 0) in p.wr):
                need = 20 if p.kind == "mfma" else (5 if any(r[0] == "s" for r in p.wr) else 3)
                worst = max(worst, need - dist)
            dist += p.ws
        if worst > 0:
            self._nop(worst)
        self.win = []

    def _nop(self, n):
        while n > 0:
            k = min(n, 16)
            i = Ins("s_nop %d" % (k - 1))
            self.lines.append("    " + i.text)
            self.win.append(i)
            self.n_ins += 1
            n -= k

    def __call__(self, text):
        for t in text.strip().split("\n"):
            t = t.strip()
            if not t or t.startswith(";"):
                continue
            self.emit(t)

    def emit(self, text):
        c = Ins(text)
        mo = re.search(r"offset:(\d+)", text.split(";")[0])
        if mo:
            ov = int(mo.group(1))
            if c.op.startswith("buffer_") or c.op.startswith("global_"):
                assert ov <= 4095, text
            if c.op.startswith("ds_"):
                assert ov <= 65535, text
        dist = 0
        worst = 0
        for p in reversed(self.win):
            need = need_ws(p, c)
            if need - dist > worst:
                worst = need - dist
            dist += p.ws
            if dist > 24:
                break
        if worst > 0:
            self._nop(worst)
        self.lines.append("    " + text)
        self.win.append(c)
        self.n_ins += 1
        if len(self.win) > 40:
            self.win = self.win[-40:]
        if c.op.startswith("s_cbranch") or c.op == "s_branch":
            pass

    def branch(self, text):
        self.flush()
        self.emit(text)

    def text(self):
        return "\n".join(self.lines) + "\n"
```

```python
import sys
sys.path.insert(0, "gen")
from asmlib import Asm

NAME = "interleave_layers__gqa_block_cached__mha_block_cached__decode"
import os
DEBUG = int(os.environ.get("DEBUG", "0"))
OUT = sys.argv[1] if len(sys.argv) > 1 else "cdna_kernels/%s.s" % NAME

def XOFF(l):
    return l * 8192
def YOFF(l):
    return 65536 + (l - 1) * 524288
POFF = 4 << 20
PMLOFF = 5 << 20
WS_SIZE = 8 << 20

RED0, RED1 = 0, 256
VEC = 1024
QV = 2048
OV = 3072
ML_M, ML_L = 4096, 4608
PART = 8192
OP = 24576

sK, sV, sWQ, sWO, sWS, sX = 8, 12, 16, 20, 24, 28
sB, sXCD, sSUB, sH, sWAVE = 32, 33, 34, 35, 36
sT, sT2, sKOFF, sCNT = 37, 38, 39, 40
sSELLO, sSELHI, sSCALE, sLOG2E, sMASKHI = 41, 42, 43, 44, 45
sP0 = 46

def srd(a, dst, ptr_lo, size):
    a("s_mov_b32 s%d, s%d" % (dst, ptr_lo))
    a("s_and_b32 s%d, s%d, 0xffff" % (dst + 1, ptr_lo + 1))
    a("s_mov_b32 s%d, 0x%x" % (dst + 2, size))
    a("s_mov_b32 s%d, 0x00020000" % (dst + 3))

def vr(base, n):
    return "v[%d:%d]" % (base, base + n - 1)

def bf16r(a, v, t):
    a("v_cvt_pk_bf16_f32 v%d, v%d, v%d" % (t, v, v))
    a("v_lshlrev_b32 v%d, 16, v%d" % (v, t))

def common_setup(a, nwg):
    a("s_cmp_ge_u32 s2, %d" % nwg)
    a("s_cbranch_scc1 %s" % a.done_label)
    a("s_and_b32 s%d, s2, 7" % sXCD)
    a("s_lshr_b32 s%d, s2, 3" % sT)
    a("s_and_b32 s%d, s%d, 3" % (sSUB, sT))
    a("s_lshr_b32 s%d, s%d, 2" % (sB, sT))
    a("s_lshl_b32 s%d, s%d, 2" % (sH, sXCD))
    a("s_add_u32 s%d, s%d, s%d" % (sH, sH, sSUB))
    a("s_mov_b32 s%d, 0x05040100" % sSELLO)
    a("s_mov_b32 s%d, 0x07060302" % sSELHI)
    a("s_mov_b32 s%d, 0x3db504f3" % sSCALE)
    a("s_mov_b32 s%d, 0x3fb8aa3b" % sLOG2E)
    a("s_mov_b32 s%d, 0xffff0000" % sMASKHI)
    a("v_lshrrev_b32 v2, 6, v0")
    a("v_readfirstlane_b32 s%d, v2" % sWAVE)

def reduce512(a, v, red, tmp):
    for r in (8, 4, 2, 1):
        a("v_add_f32_dpp v%d, v%d, v%d row_ror:%d row_mask:0xf bank_mask:0xf" % (v, v, v, r))
    a("v_lshrrev_b32 v%d, 4, v0" % (tmp + 32))
    a("v_lshlrev_b32 v%d, 2, v%d" % (tmp + 32, tmp + 32))
    a("ds_write_b32 v%d, v%d offset:%d" % (tmp + 32, v, red))
    a("v_mov_b32 v%d, 0" % (tmp + 33))
    a("s_waitcnt lgkmcnt(0)")
    a("s_barrier")
    for i in range(8):
        a("ds_read_b128 %s, v%d offset:%d" % (vr(tmp + 4 * i, 4), tmp + 33, red + 16 * i))
    a("s_waitcnt lgkmcnt(0)")
    n = 32
    while n > 1:
        for i in range(n // 2):
            a("v_add_f32 v%d, v%d, v%d" % (tmp + i, tmp + i, tmp + i + n // 2))
        n //= 2
    a("v_mov_b32 v%d, v%d" % (v, tmp))

def prologue_x(a, layer, vx, tmp):
    a("s_lshl_b32 s%d, s%d, 10" % (sT, sB))
    a("v_lshlrev_b32 v%d, 1, v0" % (tmp + 36))
    a("v_add_u32 v%d, s%d, v%d" % (tmp + 36, sT, tmp + 36))
    if layer <= 2:
        a("buffer_load_ushort v%d, v%d, s[%d:%d], 0 offen" % (vx, tmp + 36, sX, sX + 3))
    else:
        a("s_mov_b32 s%d, %d" % (sT2, XOFF(layer - 2)))
        a("buffer_load_ushort v%d, v%d, s[%d:%d], s%d offen" % (vx, tmp + 36, sWS, sWS + 3, sT2))
    if layer > 1:
        a("s_lshl_b32 s%d, s%d, 16" % (sT, sB))
        a("v_lshlrev_b32 v%d, 2, v0" % (tmp + 37))
        a("v_add_u32 v%d, s%d, v%d" % (tmp + 37, sT, tmp + 37))
        for h in range(32):
            if h % 2 == 0:
                a("s_mov_b32 s%d, %d" % (sT2, YOFF(layer - 1) + (h >> 1) * 4096))
            a("buffer_load_dword v%d, v%d, s[%d:%d], s%d offen offset:%d" % (
                tmp + h, tmp + 37, sWS, sWS + 3, sT2, (h & 1) * 2048))
    a("s_waitcnt vmcnt(0)")
    a("v_lshlrev_b32 v%d, 16, v%d" % (vx, vx))
    if layer > 1:
        n = 32
        while n > 1:
            for i in range(n // 2):
                a("v_add_f32 v%d, v%d, v%d" % (tmp + i, tmp + i, tmp + i + n // 2))
            n //= 2
        bf16r(a, tmp, tmp + 1)
        a("v_add_f32 v%d, v%d, v%d" % (vx, vx, tmp))
        a("v_cvt_pk_bf16_f32 v%d, v%d, v%d" % (tmp + 1, vx, vx))
        a("v_lshlrev_b32 v%d, 16, v%d" % (vx, tmp + 1))
        if layer <= 4:
            lab = a.newlabel()
            a("s_and_b32 s%d, s2, 31" % sT)
            a("s_cmp_lg_u32 s%d, 0" % sT)
            a.branch("s_cbranch_scc1 %s" % lab)
            a("s_mov_b32 s%d, %d" % (sT2, XOFF(layer - 1)))
            a("buffer_store_short v%d, v%d, s[%d:%d], s%d offen" % (tmp + 1, tmp + 36, sWS, sWS + 3, sT2))
            a.label(lab)

def layernorm(a, vx, tmp):
    vm, vd = tmp + 36, tmp + 37
    a("v_mov_b32 v%d, v%d" % (vm, vx))
    reduce512(a, vm, RED0, tmp)
    a("v_mul_f32 v%d, 0x3b000000, v%d" % (vm, vm))
    a("v_sub_f32 v%d, v%d, v%d" % (vd, vx, vm))
    a("v_mul_f32 v%d, v%d, v%d" % (vd, vd, vd))
    reduce512(a, vd, RED1, tmp)
    a("v_mul_f32 v%d, 0x3b000000, v%d" % (vd, vd))
    bf16r(a, vm, tmp)
    bf16r(a, vd, tmp)
    a("v_add_f32 v%d, 0x3727c5ac, v%d" % (vd, vd))
    bf16r(a, vd, tmp)
    a("v_sqrt_f32 v%d, v%d" % (vd, vd))
    bf16r(a, vd, tmp)
    a("v_sub_f32 v%d, v%d, v%d" % (vm, vx, vm))
    bf16r(a, vm, tmp)
    a("v_rcp_f32 v%d, v%d" % (vd, vd))
    a("v_mul_f32 v%d, v%d, v%d" % (vm, vm, vd))
    a("v_cvt_pk_bf16_f32 v%d, v%d, v%d" % (vm, vm, vm))
    a("v_lshlrev_b32 v%d, 1, v0" % tmp)
    a("ds_write_b16 v%d, v%d offset:%d" % (tmp, vm, VEC))
    a("s_waitcnt lgkmcnt(0)")
    a("s_barrier")

def gemv(a, srd_, K, ncols, row_stride, scol, vec, vout, tmp, after_issue=None):
    ncg = ncols // 8
    nrg = 512 // ncg
    R = K // nrg
    W = tmp
    ACC = tmp + 64
    VP = tmp + 72
    T = tmp + 80
    lg = ncg.bit_length() - 1
    a("v_and_b32 v%d, %d, v0" % (T, ncg - 1))
    a("v_lshrrev_b32 v%d, %d, v0" % (T + 1, lg))
    a("s_mov_b32 s%d, %d" % (sT, R * row_stride))
    a("v_mul_lo_u32 v%d, v%d, s%d" % (T + 2, T + 1, sT))
    a("v_lshl_add_u32 v%d, v%d, 4, v%d" % (T + 2, T, T + 2))
    a("v_lshlrev_b32 v%d, %d, v%d" % (T + 3, (R * 2).bit_length() - 1, T + 1))
    for i in range(8):
        a("v_mov_b32 v%d, 0" % (ACC + i))
    nb = R // 16
    extra = 0
    for bt in range(nb):
        for i in range(16):
            row = bt * 16 + i
            off = row * row_stride
            a("s_add_u32 s%d, s%d, %d" % (sT, scol, off & ~4095))
            a("buffer_load_dwordx4 %s, v%d, s[%d:%d], s%d offen offset:%d" % (
                vr(W + 4 * i, 4), T + 2, srd_, srd_ + 3, sT, off & 4095))
        if bt == nb - 1 and after_issue is not None:
            extra = after_issue()
        a("ds_read_b128 %s, v%d offset:%d" % (vr(VP, 4), T + 3, vec + bt * 32))
        a("ds_read_b128 %s, v%d offset:%d" % (vr(VP + 4, 4), T + 3, vec + bt * 32 + 16))
        a("s_waitcnt vmcnt(%d) lgkmcnt(0)" % extra)
        for j in range(8):
            for r in range(4):
                w0, w1 = W + 8 * j + r, W + 8 * j + 4 + r
                a("v_perm_b32 v%d, v%d, v%d, s%d" % (T + 4, w1, w0, sSELLO))
                a("v_perm_b32 v%d, v%d, v%d, s%d" % (T + 5, w1, w0, sSELHI))
                a("v_dot2_f32_bf16 v%d, v%d, v%d, v%d" % (ACC + 2 * r, T + 4, VP + j, ACC + 2 * r))
                a("v_dot2_f32_bf16 v%d, v%d, v%d, v%d" % (ACC + 2 * r + 1, T + 5, VP + j, ACC + 2 * r + 1))
    a("v_lshlrev_b32 v%d, 5, v0" % T)
    a("ds_write_b128 v%d, %s offset:%d" % (T, vr(ACC, 4), PART))
    a("ds_write_b128 v%d, %s offset:%d" % (T, vr(ACC + 4, 4), PART + 16))
    a("v_and_b32 v%d, %d, v0" % (T, ncols - 1))
    a("v_lshlrev_b32 v%d, 2, v%d" % (T, T))
    a("s_waitcnt lgkmcnt(0)")
    a("s_barrier")
    for i in range(nrg):
        a("ds_read_b32 v%d, v%d offset:%d" % (W + i, T, PART + i * ncols * 4))
    a("s_waitcnt lgkmcnt(0)")
    n = nrg
    while n > 1:
        for i in range(n // 2):
            a("v_add_f32 v%d, v%d, v%d" % (W + i, W + i, W + i + n // 2))
        n //= 2
    a("v_mov_b32 v%d, v%d" % (vout, W))

def qk_block(a, NH, KR, Q, S):
    for r in range(4):
        for h in range(NH):
            for j in range(4):
                s = S + h * 4 + j
                c = "0" if r == 0 else "v%d" % s
                a("v_dot2_f32_bf16 v%d, v%d, v%d, %s" % (s, KR + 4 * j + r, Q + 4 * h + r, c))

def qk_reduce(a, NH, S):
    for st in (8, 4, 2, 1):
        for i in range(NH * 4):
            a("v_add_f32_dpp v%d, v%d, v%d row_ror:%d row_mask:0xf bank_mask:0xf" % (S + i, S + i, S + i, st))

def softmax_block(a, NH, S, M, L, ACC, PP, T):
    for h in range(NH):
        s = [S + h * 4 + j for j in range(4)]
        for rep in range(2):
            a("v_cvt_pk_bf16_f32 v%d, v%d, v%d" % (T, s[0], s[1]))
            a("v_cvt_pk_bf16_f32 v%d, v%d, v%d" % (T + 1, s[2], s[3]))
            a("v_lshlrev_b32 v%d, 16, v%d" % (s[0], T))
            a("v_and_b32 v%d, s%d, v%d" % (s[1], sMASKHI, T))
            a("v_lshlrev_b32 v%d, 16, v%d" % (s[2], T + 1))
            a("v_and_b32 v%d, s%d, v%d" % (s[3], sMASKHI, T + 1))
            if rep == 0:
                for j in range(4):
                    a("v_mul_f32 v%d, s%d, v%d" % (s[j], sSCALE, s[j]))
        a("v_max3_f32 v%d, v%d, v%d, v%d" % (T + 2, s[0], s[1], s[2]))
        a("v_max3_f32 v%d, v%d, v%d, v%d" % (T + 2, T + 2, s[3], M + h))
        a("v_sub_f32 v%d, v%d, v%d" % (T + 3, M + h, T + 2))
        a("v_mul_f32 v%d, s%d, v%d" % (T + 3, sLOG2E, T + 3))
        a("v_exp_f32 v%d, v%d" % (T + 3, T + 3))
        a("v_mov_b32 v%d, v%d" % (M + h, T + 2))
        for j in range(4):
            a("v_sub_f32 v%d, v%d, v%d" % (s[j], s[j], T + 2))
        for j in range(4):
            a("v_mul_f32 v%d, s%d, v%d" % (s[j], sLOG2E, s[j]))
        for j in range(4):
            a("v_exp_f32 v%d, v%d" % (s[j], s[j]))
        for i in range(8):
            a("v_mul_f32 v%d, v%d, v%d" % (ACC + h * 8 + i, ACC + h * 8 + i, T + 3))
        a("v_add_f32 v%d, v%d, v%d" % (T + 4, s[0], s[1]))
        a("v_add_f32 v%d, v%d, v%d" % (T + 5, s[2], s[3]))
        a("v_add_f32 v%d, v%d, v%d" % (T + 4, T + 4, T + 5))
        a("v_fma_f32 v%d, v%d, v%d, v%d" % (L + h, L + h, T + 3, T + 4))
        a("v_cvt_pk_bf16_f32 v%d, v%d, v%d" % (PP + 2 * h, s[0], s[1]))
        a("v_cvt_pk_bf16_f32 v%d, v%d, v%d" % (PP + 2 * h + 1, s[2], s[3]))

def pv_block(a, NH, VR, PP, ACC, T):
    for p in range(2):
        for r in range(4):
            v0_, v1_ = VR + 8 * p + r, VR + 8 * p + 4 + r
            t = T + 2 * (r & 1)
            a("v_perm_b32 v%d, v%d, v%d, s%d" % (t, v1_, v0_, sSELLO))
            a("v_perm_b32 v%d, v%d, v%d, s%d" % (t + 1, v1_, v0_, sSELHI))
            for h in range(NH):
                a("v_dot2_f32_bf16 v%d, v%d, v%d, v%d" % (ACC + h * 8 + 2 * r, t, PP + 2 * h + p, ACC + h * 8 + 2 * r))
                a("v_dot2_f32_bf16 v%d, v%d, v%d, v%d" % (
                    ACC + h * 8 + 2 * r + 1, t + 1, PP + 2 * h + p, ACC + h * 8 + 2 * r + 1))

def issue_blk(a, srd_, R0, voff, soff):
    for j in range(4):
        a("buffer_load_dwordx4 %s, v%d, s[%d:%d], s%d offen offset:%d nt" % (
            vr(R0 + 4 * j, 4), voff, srd_, srd_ + 3, soff, 1024 * j))

def load_ptrs(a, which):
    for off, s in which:
        a("s_load_dwordx2 s[%d:%d], s[0:1], %d" % (s, s + 1, off))
    a("s_waitcnt lgkmcnt(0)")

def outproj_store(a, layer, tmp, vout):
    a("s_lshl_b32 s%d, s%d, 17" % (sP0, sH))
    gemv(a, sWO, 128, 512, 1024, sP0, OV, vout, tmp)
    a("s_lshl_b32 s%d, s%d, 5" % (sT, sB))
    a("s_add_u32 s%d, s%d, s%d" % (sT, sT, sH))
    a("s_lshl_b32 s%d, s%d, 11" % (sT, sT))
    a("s_add_u32 s%d, s%d, %d" % (sT, sT, YOFF(layer)))
    a("v_lshlrev_b32 v%d, 2, v0" % tmp)
    a("buffer_store_dword v%d, v%d, s[%d:%d], s%d offen" % (vout, tmp, sWS, sWS + 3, sT))

class KA(Asm):
    def __init__(self):
        super().__init__()
        self.lc = 0
    def newlabel(self):
        self.lc += 1
        return ".L%d" % self.lc

def kernel_header(a, name):
    a.raw(".globl %s" % name)
    a.raw(".p2align 8")
    a.raw(".type %s,@function" % name)
    a.raw("%s:" % name)
    a.win = []
    a.done_label = ".Ldone_%s" % name

def kernel_footer(a):
    a.label(a.done_label)
    a("s_endpgm")

def attn_kernel(a, name, layer):
    isA = layer % 2 == 1
    NH = 4 if isA else 1
    D = 4
    NB = 8 if isA else 32
    kernel_header(a, name)
    common_setup(a, 256)
    base = 0 if isA else 40
    load_ptrs(a, [(base + 8, 46), (base + 16, 48), (base + 24, 50), (base + 32, 52), (96, 54), (0, 56)])
    if isA:
        a("s_lshl_b32 s%d, s%d, 3" % (sT, sB))
        a("s_add_u32 s%d, s%d, s%d" % (sT, sT, sXCD))
        a("s_lshl_b32 s%d, s%d, 20" % (sT, sT))
        a("s_lshl_b32 s%d, s%d, 18" % (sT2, sSUB))
        a("s_add_u32 s%d, s%d, s%d" % (sT, sT, sT2))
        ksz = 1 << 18
    else:
        a("s_lshl_b32 s%d, s%d, 5" % (sT, sB))
        a("s_add_u32 s%d, s%d, s%d" % (sT, sT, sH))
        a("s_lshl_b32 s%d, s%d, 20" % (sT, sT))
        ksz = 1 << 20
    for p in (46, 48):
        a("s_add_u32 s%d, s%d, s%d" % (p, p, sT))
        a("s_addc_u32 s%d, s%d, 0" % (p + 1, p + 1))
    srd(a, sK, 46, ksz)
    srd(a, sV, 48, ksz)
    srd(a, sWQ, 50, 4 << 20)
    srd(a, sWO, 52, 4 << 20)
    srd(a, sWS, 54, WS_SIZE)
    srd(a, sX, 56, 8192)
    VOFF = 1
    VX = 2
    Q = 4
    ACC = Q + 16
    M = ACC + 32
    L = M + 4
    S = L + 4
    PP = S + 16
    T = PP + 8
    RING = T + 8
    assert RING % 4 == 0
    KR = [RING + 32 * i for i in range(D)]
    VRG = [RING + 32 * i + 16 for i in range(D)]
    TMP = 4
    a("v_and_b32 v%d, 63, v0" % VOFF)
    a("v_lshlrev_b32 v%d, 4, v%d" % (VOFF, VOFF))
    a("s_lshl_b32 s%d, s%d, %d" % (sT, sWAVE, 15 if isA else 17))
    a("v_add_u32 v%d, s%d, v%d" % (VOFF, sT, VOFF))
    prologue_x(a, layer, VX, TMP)
    layernorm(a, VX, TMP)
    if isA:
        a("s_lshl_b32 s%d, s%d, 10" % (sP0, sXCD))
    else:
        a("s_lshl_b32 s%d, s%d, 8" % (sP0, sH))
    def ring_issue():
        a("s_mov_b32 s%d, 0" % sKOFF)
        for i in range(D):
            issue_blk(a, sK, KR[i], VOFF, sKOFF)
            issue_blk(a, sV, VRG[i], VOFF, sKOFF)
            a("s_add_u32 s%d, s%d, 4096" % (sKOFF, sKOFF))
        return 8 * D
    gemv(a, sWQ, 512, 128 * NH, 8192, sP0, VEC, VX, TMP, after_issue=ring_issue)
    if DEBUG:
        a("v_and_b32 v3, %d, v0" % (128 * NH - 1))
        a("v_lshlrev_b32 v3, 2, v3")
        a("s_lshl_b32 s%d, s%d, 14" % (sT, sB))
        a("s_lshl_b32 s%d, s%d, 1" % (sT2, sP0))
        a("s_add_u32 s%d, s%d, s%d" % (sT, sT, sT2))
        a("s_add_u32 s%d, s%d, %d" % (sT, sT, (6 << 20) + (layer - 1) * 131072))
        a("buffer_store_dword v%d, v3, s[%d:%d], s%d offen" % (VX, sWS, sWS + 3, sT))
        a("s_waitcnt vmcnt(0)")
    a("v_cvt_pk_bf16_f32 v%d, v%d, v%d" % (VX, VX, VX))
    a("v_and_b32 v3, %d, v0" % (128 * NH - 1))
    a("v_lshlrev_b32 v3, 1, v3")
    a("ds_write_b16 v3, v%d offset:%d" % (VX, QV))
    a("v_and_b32 v3, 15, v0")
    a("v_lshlrev_b32 v3, 4, v3")
    a("s_waitcnt lgkmcnt(0)")
    a("s_barrier")
    for h in range(NH):
        a("ds_read_b128 %s, v3 offset:%d" % (vr(Q + 4 * h, 4), QV + 256 * h))
    for i in range(NH * 8):
        a("v_mov_b32 v%d, 0" % (ACC + i))
    for h in range(NH):
        a("v_mov_b32 v%d, 0xf149f2ca" % (M + h))
        a("v_mov_b32 v%d, 0" % (L + h))
    a("s_waitcnt lgkmcnt(0)")

    def block(slot, prefetch, rem):
        nk = (2 * D - 1) * 4 if prefetch else (2 * (rem - 1) + 1) * 4
        a("s_waitcnt vmcnt(%d)" % nk)
        qk_block(a, NH, KR[slot], Q, S)
        if prefetch:
            issue_blk(a, sK, KR[slot], VOFF, sKOFF)
        qk_reduce(a, NH, S)
        softmax_block(a, NH, S, M, L, ACC, PP, T)
        nv = (2 * D - 1) * 4 if prefetch else (2 * (rem - 1)) * 4
        a("s_waitcnt vmcnt(%d)" % nv)
        pv_block(a, NH, VRG[slot], PP, ACC, T)
        if prefetch:
            issue_blk(a, sV, VRG[slot], VOFF, sKOFF)
            a("s_add_u32 s%d, s%d, 4096" % (sKOFF, sKOFF))

    nit = (NB - D) // D
    a("s_mov_b32 s%d, %d" % (sCNT, nit))
    lp = a.newlabel()
    a.label(lp)
    for s_ in range(D):
        block(s_, True, 0)
    a("s_sub_u32 s%d, s%d, 1" % (sCNT, sCNT))
    a("s_cmp_lg_u32 s%d, 0" % sCNT)
    a.branch("s_cbranch_scc1 %s" % lp)
    for s_ in range(D):
        block(s_, False, D - s_)

    a("v_lshrrev_b32 v2, 4, v0")
    a("v_lshlrev_b32 v3, 2, v2")
    for h in range(NH):
        a("ds_write_b32 v3, v%d offset:%d" % (M + h, ML_M + 128 * h))
        a("ds_write_b32 v3, v%d offset:%d" % (L + h, ML_L + 128 * h))
    a("v_lshlrev_b32 v3, 5, v0")
    a("v_add_u32 v3, %d, v3" % OP)
    for h in range(NH):
        a("ds_write_b128 v3, %s offset:%d" % (vr(ACC + 8 * h, 4), 16384 * h))
        a("ds_write_b128 v3, %s offset:%d" % (vr(ACC + 8 * h + 4, 4), 16384 * h + 16))
    a("s_waitcnt lgkmcnt(0)")
    a("s_barrier")
    MM, LL, OO = 96, 128, 160
    a("v_lshrrev_b32 v2, 7, v0")
    a("v_and_b32 v2, %d, v2" % (NH - 1))
    a("v_lshlrev_b32 v3, 7, v2")
    for i in range(8):
        a("ds_read_b128 %s, v3 offset:%d" % (vr(MM + 4 * i, 4), ML_M + 16 * i))
        a("ds_read_b128 %s, v3 offset:%d" % (vr(LL + 4 * i, 4), ML_L + 16 * i))
    a("v_and_b32 v4, 127, v0")
    a("v_lshlrev_b32 v4, 2, v4")
    a("v_lshl_add_u32 v4, v2, 14, v4")
    for i in range(32):
        a("ds_read_b32 v%d, v4 offset:%d" % (OO + i, OP + 512 * i))
    a("s_waitcnt lgkmcnt(0)")
    a("v_max3_f32 v6, v%d, v%d, v%d" % (MM, MM + 1, MM + 2))
    for i in range(3, 31, 2):
        a("v_max3_f32 v6, v6, v%d, v%d" % (MM + i, MM + i + 1))
    a("v_max_f32 v6, v6, v%d" % (MM + 31))
    for i in range(32):
        a("v_sub_f32 v%d, v%d, v6" % (MM + i, MM + i))
    for i in range(32):
        a("v_mul_f32 v%d, s%d, v%d" % (MM + i, sLOG2E, MM + i))
    for i in range(32):
        a("v_exp_f32 v%d, v%d" % (MM + i, MM + i))
    a("v_mul_f32 v7, v%d, v%d" % (MM, LL))
    a("v_mul_f32 v9, v%d, v%d" % (MM, OO))
    for i in range(1, 32):
        a("v_fma_f32 v7, v%d, v%d, v7" % (MM + i, LL + i))
        a("v_fma_f32 v9, v%d, v%d, v9" % (MM + i, OO + i))
    if isA:
        a("s_lshl_b32 s%d, s%d, 3" % (sT, sB))
        a("s_add_u32 s%d, s%d, s%d" % (sT, sT, sXCD))
        a("s_lshl_b32 s%d, s%d, 2" % (sT, sT))
        a("s_add_u32 s%d, s%d, s%d" % (sT, sT, sSUB))
        a("s_lshl_b32 s%d, s%d, 11" % (sT2, sT))
        a("s_add_u32 s%d, s%d, %d" % (sT2, sT2, POFF))
        a("v_lshlrev_b32 v8, 2, v0")
        a("buffer_store_dword v9, v8, s[%d:%d], s%d offen" % (sWS, sWS + 3, sT2))
        a("s_lshl_b32 s%d, s%d, 5" % (sT, sT))
        a("s_add_u32 s%d, s%d, %d" % (sT, sT, PMLOFF))
        a("v_lshlrev_b32 v8, 3, v2")
        a("buffer_store_dwordx2 v[6:7], v8, s[%d:%d], s%d offen" % (sWS, sWS + 3, sT))
    else:
        a("v_rcp_f32 v7, v7")
        a("v_mul_f32 v9, v9, v7")
        a("v_cvt_pk_bf16_f32 v9, v9, v9")
        a("v_and_b32 v4, 127, v0")
        a("v_lshlrev_b32 v4, 1, v4")
        a("ds_write_b16 v4, v9 offset:%d" % OV)
        a("s_waitcnt lgkmcnt(0)")
        a("s_barrier")
        outproj_store(a, layer, 4, 2)
    kernel_footer(a)
    return 90112 if isA else 40960

def ao_kernel(a, name, layer):
    kernel_header(a, name)
    common_setup(a, 256)
    load_ptrs(a, [(32, 52), (96, 54)])
    srd(a, sWO, 52, 4 << 20)
    srd(a, sWS, 54, WS_SIZE)
    a("s_lshl_b32 s%d, s%d, 3" % (sT, sB))
    a("s_add_u32 s%d, s%d, s%d" % (sT, sT, sXCD))
    a("s_lshl_b32 s%d, s%d, 4" % (sT, sT))
    a("s_add_u32 s%d, s%d, s%d" % (sT, sT, sSUB))
    a("s_lshl_b32 s%d, s%d, 9" % (sT2, sT))
    a("s_add_u32 s%d, s%d, %d" % (sT2, sT2, POFF))
    a("s_lshl_b32 s%d, s%d, 3" % (sT, sT))
    a("s_add_u32 s%d, s%d, %d" % (sT, sT, PMLOFF))
    a("v_and_b32 v4, 127, v0")
    a("v_lshlrev_b32 v5, 2, v4")
    a("v_mov_b32 v6, 0")
    for c in range(4):
        a("buffer_load_dword v%d, v5, s[%d:%d], s%d offen" % (8 + c, sWS, sWS + 3, sT2))
        a("s_add_u32 s%d, s%d, 2048" % (sT2, sT2))
        a("buffer_load_dwordx2 v[%d:%d], v6, s[%d:%d], s%d offen offset:%d" % (
            12 + 2 * c, 13 + 2 * c, sWS, sWS + 3, sT, 32 * c))
    a("s_waitcnt vmcnt(0)")
    a("v_max3_f32 v7, v12, v14, v16")
    a("v_max_f32 v7, v7, v18")
    for c in range(4):
        a("v_sub_f32 v%d, v%d, v7" % (12 + 2 * c, 12 + 2 * c))
    for c in range(4):
        a("v_mul_f32 v%d, s%d, v%d" % (12 + 2 * c, sLOG2E, 12 + 2 * c))
    for c in range(4):
        a("v_exp_f32 v%d, v%d" % (12 + 2 * c, 12 + 2 * c))
    a("v_mul_f32 v20, v12, v13")
    a("v_mul_f32 v21, v12, v8")
    for c in range(1, 4):
        a("v_fma_f32 v20, v%d, v%d, v20" % (12 + 2 * c, 13 + 2 * c))
        a("v_fma_f32 v21, v%d, v%d, v21" % (12 + 2 * c, 8 + c))
    a("v_rcp_f32 v20, v20")
    a("v_mul_f32 v21, v21, v20")
    a("v_cvt_pk_bf16_f32 v21, v21, v21")
    a("v_lshlrev_b32 v4, 1, v4")
    a("ds_write_b16 v4, v21 offset:%d" % OV)
    a("s_waitcnt lgkmcnt(0)")
    a("s_barrier")
    outproj_store(a, layer, 4, 2)
    kernel_footer(a)
    return 24576

def final_kernel(a, name):
    kernel_header(a, name)
    a("s_cmp_ge_u32 s2, 8")
    a("s_cbranch_scc1 %s" % a.done_label)
    a("s_mov_b32 s%d, s2" % sB)
    load_ptrs(a, [(96, 54), (80, 56)])
    srd(a, sWS, 54, WS_SIZE)
    srd(a, sX, 56, 8192)
    prologue_x(a, 5, 2, 4)
    a("buffer_store_short v5, v40, s[%d:%d], 0 offen" % (sX, sX + 3))
    kernel_footer(a)
    return 0

def main():
    a = KA()
    launches = []
    body = KA()
    kernels = []
    for layer in range(1, int(os.environ.get("LAYERS", "4")) + 1):
        nm = "attn%d_kernel" % layer
        lds = attn_kernel(body, nm, layer)
        launches.append((nm, 256, 512, lds))
        kernels.append(nm)
        if layer % 2 == 1:
            nm = "ao%d_kernel" % layer
            lds = ao_kernel(body, nm, layer)
            launches.append((nm, 256, 512, lds))
            kernels.append(nm)
    lds = final_kernel(body, "final_kernel")
    launches.append(("final_kernel", 8, 512, lds))
    kernels.append("final_kernel")
    hdr = open("cdna_kernels/%s.s.ref" % NAME).read().split("; Override")[0]
    out = hdr
    for nm, g, b, lds in launches:
        out += "; @launch kernel=%s grid=(%d,1,1) block=(%d,1,1) lds=%d\n" % (nm, g, b, lds)
    out += '.amdgcn_target "amdgcn-amd-amdhsa--gfx950"\n.text\n'
    out += body.text()
    out += '.section .rodata,"a"\n'
    for nm in kernels:
        out += """.p2align 6
.amdhsa_kernel %s
  .amdhsa_next_free_vgpr 256
  .amdhsa_next_free_sgpr 96
  .amdhsa_accum_offset 256
  .amdhsa_group_segment_fixed_size 0
  .amdhsa_kernarg_size 104
  .amdhsa_user_sgpr_count 2
  .amdhsa_user_sgpr_kernarg_segment_ptr 1
  .amdhsa_system_sgpr_workgroup_id_x 1
  .amdhsa_float_denorm_mode_32 3
  .amdhsa_float_denorm_mode_16_64 3
.end_amdhsa_kernel
""" % nm
    open(OUT, "w").write(out)
    print("wrote", OUT, "instructions:", body.n_ins)

main()
```
